```python
import torch

def _softmax(x, axis=-1):
    return torch.softmax(x, dim=axis)
def _gelu(x):
    return torch.nn.functional.gelu(x, approximate="tanh")
def _silu(x):
    return torch.nn.functional.silu(x)
def _sigmoid(x):
    return torch.sigmoid(x)
def _layernorm(x, axis=-1, eps=1e-5):
    m = x.mean(dim=axis, keepdim=True)
    v = x.var(dim=axis, keepdim=True, unbiased=False)
    return (x - m) / torch.sqrt(v + eps)
def _scatter_add(tgt, idx, src, axis=0):
    return tgt.clone().index_add_(axis, idx, src)
def _segment_sum(src, seg, n):
    out = torch.zeros((n,) + src.shape[1:], dtype=src.dtype)
    return out.index_add_(0, seg, src)
def _pad(x, pw):
    flat = tuple(v for pair in reversed(pw) for v in pair)
    return torch.nn.functional.pad(x, flat)

kernel_name = 'parallel_sum__ssm_conv_h3__dense_activation_silu__prompt'

def setup_inputs():

    _w = (lambda a: (lambda t: t.to(torch.bfloat16) if t.is_floating_point() else t)(torch.as_tensor(a)))
    def _A_setup():
        B, S, D = 1, 2048, 448
        ks = 4
        return {
            "q": _w((lambda *s: torch.randn(*s, dtype=torch.bfloat16) * 0.05)(B, S, D)),
            "k": _w((lambda *s: torch.randn(*s, dtype=torch.bfloat16) * 0.2)(B, S, D)),
            "v": _w((lambda *s: torch.randn(*s, dtype=torch.bfloat16) * 0.2)(B, S, D)),
            "shift_k": _w((lambda *s: torch.randn(*s, dtype=torch.bfloat16) * 0.2)(D, ks) * 0.5),
            "ssm_k": _w((lambda *s: torch.randn(*s, dtype=torch.bfloat16) * 0.4)(D, S) * (1.0 / S ** 0.5)),
            "ssm_D": _w((lambda *s: torch.randn(*s, dtype=torch.bfloat16) * 0.2)(D)),
        }
    _A_in = _A_setup()

    def _B_setup():
        B, S, D, F = 1, 2048, 448, 1792
        return {
            "x": _w((lambda *s: torch.randn(*s, dtype=torch.bfloat16) * 0.05)(B, S, D)),
            "w1": _w((lambda *s: torch.randn(*s, dtype=torch.bfloat16) * 0.8)(D, F) * (D ** -0.5)),
            "w2": _w((lambda *s: torch.randn(*s, dtype=torch.bfloat16) * 0.1)(F, D) * (F ** -0.5)),
        }
    _B_in = _B_setup()

    return {
        "A_q": _A_in["q"],
        "A_k": _A_in["k"],
        "A_v": _A_in["v"],
        "A_shift_k": _A_in["shift_k"],
        "A_ssm_k": _A_in["ssm_k"],
        "A_ssm_D": _A_in["ssm_D"],
        "B_x": _B_in["x"],
        "B_w1": _B_in["w1"],
        "B_w2": _B_in["w2"],
    }

def reference(A_q, A_k, A_v, A_shift_k, A_ssm_k, A_ssm_D, B_x, B_w1, B_w2):
    def _A_ref(q, k, v, shift_k, ssm_k, ssm_D):
        B, S, D = q.shape
        ks = shift_k.shape[-1]
        k_pad = _pad(k, ((0, 0), (ks - 1, 0), (0, 0)))
        k_shift = torch.zeros_like(k)
        for t in range(ks):
            k_shift = k_shift + k_pad[:, t:t + S, :] * shift_k[:, ks - 1 - t][None, None, :]
        kv = k_shift * v
        L = 2 * S
        kv_pad = _pad(kv, ((0, 0), (0, S), (0, 0)))
        kf_pad = _pad(ssm_k, ((0, 0), (0, S)))
        kv_f = (lambda x, axes=(-2,-1): torch.fft.rfft2(x.float(), dim=axes))(kv_pad[:, None, :, :], axes=(1, 2))
        kf_f = (lambda x, axes=(-2,-1): torch.fft.rfft2(x.float(), dim=axes))(kf_pad[:, None, :], axes=(1, 2))
        kf_f = (lambda x, *d: x.permute(*d))(kf_f, 1, 2, 0)
        y_f = kv_f * kf_f[None, :, :, :]
        y = (lambda x, s, axes=(-2,-1): torch.fft.irfft2(x, s=s, dim=axes).to(torch.bfloat16))(y_f, (1, L), axes=(1, 2))[:, 0, :S, :]
        y = y + kv * ssm_D[None, None, :]
        return q * y

    def _B_ref(x, w1, w2):
        h = torch.einsum("bsd,df->bsf", x, w1)
        h = _silu(h)
        out = torch.einsum("bsf,fd->bsd", h, w2)
        return out

    x = A_q
    xn = _layernorm(x, axis=-1)
    return x + _A_ref(xn, A_k, A_v, A_shift_k, A_ssm_k, A_ssm_D) + _B_ref(xn, B_w1, B_w2)
```

```python
import re

TRANS = ("v_exp_f32", "v_rcp_f32", "v_rsq_f32", "v_sqrt_f32", "v_log_f32")


def _regs(tok):
    tok = tok.strip()
    out = set()
    m = re.fullmatch(r"-?\|?([vas])\[(\d+):(\d+)\]\|?", tok)
    if m:
        for i in range(int(m.group(2)), int(m.group(3)) + 1):
            out.add((m.group(1), i))
        return out
    m = re.fullmatch(r"-?\|?([vas])(\d+)\|?", tok)
    if m:
        out.add((m.group(1), int(m.group(2))))
        return out
    if tok in ("vcc", "exec", "m0", "scc"):
        out.add((tok, 0))
    return out


class Ins:
    __slots__ = ("text", "op", "wr", "rd", "kind", "passes", "srcc", "states")

    def __init__(self, text):
        self.text = text
        t = text.split(";")[0].strip()
        parts = t.split(None, 1)
        self.op = parts[0]
        ops = []
        if len(parts) > 1:
            ops = [x.strip() for x in re.split(r",(?![^\[]*\])", parts[1])]
            ops = [o.split()[0] if o else o for o in ops]
        op = self.op
        self.wr, self.rd = set(), set()
        self.passes = 0
        self.srcc = set()
        self.states = 1
        if op == "s_nop":
            self.kind = "nop"
            self.states = int(ops[0], 0) + 1
        elif op.startswith("v_mfma"):
            self.kind = "mfma"
            self.wr = _regs(ops[0])
            self.rd = _regs(ops[1]) | _regs(ops[2]) | _regs(ops[3])
            self.srcc = _regs(ops[3])
            self.passes = 8 if "32x32" in op else 4
        elif op.startswith("buffer_store") or op.startswith("buffer_atomic"):
            self.kind = "vmem_st"
            for o in ops:
                self.rd |= _regs(o)
        elif op.startswith("buffer_load"):
            self.kind = "vmem_ld"
            if " lds" in t:
                for o in ops:
                    self.rd |= _regs(o)
                self.rd.add(("m0", 0))
                self.kind = "vmem_dma"
            else:
                self.wr = _regs(ops[0])
                for o in ops[1:]:
                    self.rd |= _regs(o)
        elif op.startswith("ds_write"):
            self.kind = "ds_st"
            for o in ops:
                self.rd |= _regs(o)
        elif op.startswith("ds_read"):
            self.kind = "ds_ld"
            self.wr = _regs(ops[0])
            for o in ops[1:]:
                self.rd |= _regs(o)
        elif op.startswith("v_cmp"):
            self.kind = "valu"
            self.wr = _regs(ops[0])
            for o in ops[1:]:
                self.rd |= _regs(o)
        elif op.startswith("v_readfirstlane") or op.startswith("v_readlane"):
            self.kind = "valu_rl"
            self.wr = _regs(ops[0])
            for o in ops[1:]:
                self.rd |= _regs(o)
        elif op.startswith("v_"):
            self.kind = "valu"
            base = op.replace("_e32", "").replace("_e64", "")
            if base in TRANS:
                self.kind = "trans"
            self.wr = _regs(ops[0])
            for o in ops[1:]:
                self.rd |= _regs(o)
            if "fmac" in op or "dot2c" in op or "permlane" in op:
                self.rd |= self.wr
            if "permlane" in op:
                self.wr |= _regs(ops[1])
            if "cndmask" in op and len(ops) == 3:
                self.rd.add(("vcc", 0))
        elif op.startswith("s_"):
            self.kind = "salu"
            if ops and not op.startswith("s_cmp") and not op.startswith("s_waitcnt") and not op.startswith("s_cbranch") \
                    and not op.startswith("s_branch") and op not in ("s_barrier", "s_endpgm", "s_setprio", "s_sleep"):
                self.wr = _regs(ops[0])
                for o in ops[1:]:
                    self.rd |= _regs(o)
            else:
                for o in ops:
                    self.rd |= _regs(o)
        else:
            self.kind = "other"


class Asm:
    def __init__(self):
        self.lines = []
        self.ins = []
        self.vm = []
        self.lg = []
        self.nlabel = 0

    def raw(self, text):
        self.lines.append(text)

    def label(self, name):
        self.lines.append(name + ":")

    def newlabel(self, base="L"):
        self.nlabel += 1
        return f"{base}_{self.nlabel}"

    def __call__(self, text, tag=None):
        for t in text.split("\n"):
            t = t.strip()
            if not t:
                continue
            i = Ins(t)
            self.ins.append(i)
            self.lines.append("    " + t)
            if i.kind in ("vmem_ld", "vmem_st", "vmem_dma"):
                self.vm.append(tag)
                assert len(self.vm) <= 63, f"more than 63 vmem outstanding at: {t}"
            elif i.kind in ("ds_ld", "ds_st"):
                self.lg.append(tag)

    def comment(self, text):
        self.lines.append("    ; " + text)

    def wait_vm(self, *tags):
        idx = [i for i, t in enumerate(self.vm) if t in tags]
        if not idx:
            return
        younger = self.vm[max(idx) + 1:]
        n = len([t for t in younger if not (isinstance(t, str) and t.startswith("opt:"))])
        self(f"s_waitcnt vmcnt({n})")
        self.vm = younger

    def wait_vm_all(self):
        self("s_waitcnt vmcnt(0)")
        self.vm = []

    def wait_lg(self, *tags):
        idx = [i for i, t in enumerate(self.lg) if t in tags]
        if not idx:
            return
        n = len(self.lg) - 1 - max(idx)
        if n > 15:
            n = 15
            self(f"s_waitcnt lgkmcnt({n})")
            self.lg = self.lg[len(self.lg) - 15:]
            return
        self(f"s_waitcnt lgkmcnt({n})")
        self.lg = self.lg[max(idx) + 1:]

    def wait_lg_all(self):
        self("s_waitcnt lgkmcnt(0)")
        self.lg = []

    def check(self):
        probs = []
        ins = self.ins
        n = len(ins)
        for i, p in enumerate(ins):
            if p.kind in ("nop", "other"):
                continue
            dist = 0
            for j in range(i + 1, min(n, i + 24)):
                c = ins[j]
                need = 0
                vw = {r for r in p.wr if r[0] in "va"}
                sw = {r for r in p.wr if r[0] in ("s", "vcc")}
                if p.kind in ("valu", "trans", "valu_rl"):
                    if c.kind == "mfma" and vw & c.rd:
                        need = max(need, 2)
                    if c.kind == "valu_rl" and vw & c.rd:
                        need = max(need, 1)
                    if ("dpp" in c.op or "quad_perm" in c.text or "row_" in c.text) and vw & c.rd:
                        need = max(need, 2)
                    if "permlane" in c.op and vw & c.rd:
                        need = max(need, 2)
                    if p.kind == "trans" and c.kind in ("valu", "valu_rl") and vw & c.rd:
                        need = max(need, 1)
                    if sw and c.kind.startswith("vmem") and sw & c.rd:
                        need = max(need, 5)
                    if sw and c.kind in ("valu", "trans", "valu_rl") and sw & c.rd:
                        need = max(need, 2)
                    if ("sdwa" in p.op or "op_sel:" in p.text and "pk" not in p.op and "mix" not in p.op) and \
                            c.kind in ("valu", "trans") and vw & c.rd:
                        need = max(need, 1)
                if p.kind == "salu" and ("m0", 0) in p.wr and c.kind == "vmem_dma":
                    need = max(need, 1)
                if p.kind == "mfma":
                    big = {4: 8, 8: 12}[p.passes]
                    if c.kind == "mfma":
                        ab = c.rd - c.srcc
                        if p.wr & ab:
                            need = max(need, big)
                        if p.wr & c.srcc and not (p.wr == c.srcc and p.passes == c.passes):
                            need = max(need, {4: 6, 8: 10}[p.passes])
                        if p.wr & c.wr and not (p.wr & c.srcc):
                            need = max(need, big)
                    elif c.kind in ("valu", "trans", "valu_rl"):
                        if p.wr & (c.rd | c.wr):
                            need = max(need, big)
                        if p.srcc & c.wr:
                            need = max(need, {4: 3, 8: 7}[p.passes])
                    elif c.kind in ("vmem_st", "ds_st", "vmem_ld", "ds_ld", "vmem_dma"):
                        if p.wr & (c.rd | c.wr):
                            need = max(need, big)
                if p.kind == "vmem_st" and ("x4" in p.op or "x3" in p.op):
                    data = _regs(re.split(r",(?![^\[]*\])", p.text.split(None, 1)[1])[0])
                    if data & c.wr:
                        need = max(need, 2)
                if need > dist:
                    probs.append(f"hazard need {need} have {dist}:\n   {p.text}\n   {c.text}")
                dist += c.states
                if dist >= 20:
                    break
        return probs

    def text(self):
        return "\n".join(self.lines) + "\n"
```

```python
import sys
from asmlib import Asm

KN = "parallel_sum__ssm_conv_h3__dense_activation_silu__prompt_kernel"

NONCE = 0
FLG_KV = 0x1000
FLG_H = 0x2000
FLG_Y = 0x3000
STATS = 0x4000
KVT = 0x10000
YT = 0x1D0000
HF = 0x390000
WS_END = 0xA90000
TS = 0xA90000

XR = 0
WR = 65536
MISC = 131072
KT = MISC
VT = MISC + 8192
HALO = MISC + 16384
RL = MISC + 17408
CS = 163328
CB = 114688
CH_SZ = 21248
HP = 4160
UOFF = 16640
CRED = 65536
REDP = [98304, 114688, 135936]
XSLOT_ORDER = [3, 0, 1, 2]

sW = 3
SQ, SK, SV, SW1, SW2, SH, SWS, SOUT, SSH = 8, 12, 16, 20, 24, 28, 32, 36, 40
sDp = 44
sD = 46
sTag = 47
sX, sJ = 48, 49
sMi, sNi, sSi, sDi = 50, 51, 52, 53
sJq, sJr = 54, 55
sXo, sWo = 56, 57
sSt = 58
sVg, sVo = 59, 60
sHg, sHo = 61, 62
sT0, sT1, sT2, sT3 = 63, 64, 65, 66
sHs = 67
sSpin = 71
sM = 72
sC = 73
sCode = 76
sStamp = 82
sXb, sXe, sWb, sVb, sVe, sHb, sHe = 76, 77, 78, 79, 80, 81, 61

LOG2E = 0x3FB8AA3B


def srd(n):
    return f"s[{n}:{n + 3}]"


def vr(a, n=1):
    return f"v{a}" if n == 1 else f"v[{a}:{a + n - 1}]"


def ar(a, n=1):
    return f"a{a}" if n == 1 else f"a[{a}:{a + n - 1}]"


class Gen:
    def __init__(self, diag=False, map2d=True, rot=True, opts=None):
        self.a = Asm()
        self.diag = diag
        self.map2d = map2d
        self.rot = rot
        self.o = opts or {}
        self.nstamp = 0

    def stamp(self):
        if self.diag:
            i = self.nstamp
            self.nstamp += 1
            assert i < 10
            self.a(f"s_memrealtime s[{sStamp + 2 * i}:{sStamp + 2 * i + 1}]")

    def store_stamps(self):
        a = self.a
        if not self.diag:
            return
        a("s_waitcnt vmcnt(0) lgkmcnt(0)")
        a.vm = []
        a.lg = []
        a(f"s_lshl_b32 s{sT0}, s2, 2")
        a(f"s_add_u32 s{sT0}, s{sT0}, s{sW}")
        a(f"s_lshl_b32 s{sT0}, s{sT0}, 6")
        a(f"s_add_u32 s{sT0}, s{sT0}, {TS}")
        a("v_mov_b32 v2, 0")
        for i in range(self.nstamp):
            a(f"v_mov_b32 v3, s{sStamp + 2 * i}")
            a(f"buffer_store_dword v3, v2, {srd(SWS)}, s{sT0} offen offset:{4 * i}")
            a("s_nop 1")
        a("s_waitcnt vmcnt(0)")
        a.vm = []

    def poll(self, vdst, vaddr, soff, width=1, tagreg=None):
        a = self.a
        L = a.newlabel("L_poll")
        Ld = a.newlabel("L_polld")
        a(f"s_mov_b32 s{sSpin}, 0")
        a.label(L)
        if width == 1:
            a(f"buffer_load_dword v{vdst}, v{vaddr}, {srd(SWS)}, {soff} offen sc1")
            chk = vdst
        else:
            a(f"buffer_load_dwordx2 v[{vdst}:{vdst + 1}], v{vaddr}, {srd(SWS)}, {soff} offen sc1")
            chk = vdst + 1
        a.wait_vm_all()
        a(f"v_cmp_ne_u32 vcc, s{sTag}, v{chk}")
        a(f"s_add_u32 s{sSpin}, s{sSpin}, 1")
        a(f"s_cmp_gt_u32 s{sSpin}, 0x40000")
        a(f"s_cbranch_vccz {Ld}")
        a(f"s_cbranch_scc0 {L}")
        a.label(Ld)

    def prologue(self):
        a = self.a
        a("s_cmp_ge_u32 s2, 256")
        a("s_cbranch_scc1 L_end")
        a(f"s_load_dwordx2 s[{SW1}:{SW1 + 1}], s[0:1], 56")
        a(f"s_load_dwordx2 s[{SQ}:{SQ + 1}], s[0:1], 0")
        a(f"s_load_dwordx2 s[{SK}:{SK + 1}], s[0:1], 8")
        a(f"s_load_dwordx2 s[{SV}:{SV + 1}], s[0:1], 16")
        a(f"s_load_dwordx2 s[{SWS}:{SWS + 1}], s[0:1], 88")
        a(f"s_load_dwordx2 s[{SSH}:{SSH + 1}], s[0:1], 24")
        a(f"s_load_dwordx2 s[{SH}:{SH + 1}], s[0:1], 32")
        a(f"s_load_dwordx2 s[{sDp}:{sDp + 1}], s[0:1], 40")
        a(f"s_load_dwordx2 s[{SW2}:{SW2 + 1}], s[0:1], 64")
        a(f"s_load_dwordx2 s[{SOUT}:{SOUT + 1}], s[0:1], 72")
        self.stamp()
        a("v_lshrrev_b32 v2, 6, v0")
        a("v_and_b32 v1, 63, v0")
        a(f"s_and_b32 s{sX}, s2, 7")
        a(f"v_readfirstlane_b32 s{sW}, v2")
        a(f"s_lshr_b32 s{sJ}, s2, 3")
        for r, n in ((SQ, 2048 * 896), (SK, 2048 * 896), (SV, 2048 * 896), (SW1, 448 * 3584), (SW2, 1792 * 896),
                     (SH, 448 * 4096), (SWS, WS_END + (0x10000 if self.diag else 0)), (SOUT, 2048 * 896), (SSH, 448 * 8)):
            a(f"s_mov_b32 s{r + 2}, {n}")
            a(f"s_mov_b32 s{r + 3}, 0x20000")
        a("s_cmp_ge_u32 s2, 224")
        a("s_cbranch_scc1 L_helper")

    def ffn_setup(self):
        a = self.a
        a(f"s_mul_i32 s{sJq}, s{sJ}, 37")
        a(f"s_lshr_b32 s{sJq}, s{sJq}, 8")
        a(f"s_mul_i32 s{sT0}, s{sJq}, 7")
        a(f"s_sub_u32 s{sJr}, s{sJ}, s{sT0}")
        a(f"s_lshl_b32 s{sSi}, s{sX}, 2")
        a(f"s_add_u32 s{sSi}, s{sSi}, s{sJq}")
        a(f"s_mov_b32 s{sDi}, s{sJr}")
        if self.map2d:
            a(f"s_lshr_b32 s{sMi}, s{sX}, 1")
            a(f"s_lshl_b32 s{sMi}, s{sMi}, 2")
            a(f"s_add_u32 s{sMi}, s{sMi}, s{sJq}")
            a(f"s_and_b32 s{sNi}, s{sX}, 1")
            a(f"s_mul_i32 s{sNi}, s{sNi}, 7")
            a(f"s_add_u32 s{sNi}, s{sNi}, s{sJr}")
            a(f"s_lshl_b32 s{sSt}, s{sJq}, 1")
            a(f"s_add_u32 s{sSt}, s{sSt}, s{sJr}")
        else:
            a(f"s_lshr_b32 s{sT0}, s{sJq}, 1")
            a(f"s_lshl_b32 s{sMi}, s{sX}, 1")
            a(f"s_add_u32 s{sMi}, s{sMi}, s{sT0}")
            a(f"s_and_b32 s{sNi}, s{sJq}, 1")
            a(f"s_mul_i32 s{sNi}, s{sNi}, 7")
            a(f"s_add_u32 s{sNi}, s{sNi}, s{sJr}")
            a(f"s_mul_i32 s{sSt}, s{sT0}, 3")
            a(f"s_add_u32 s{sSt}, s{sSt}, s{sJr}")
        a(f"s_cmp_ge_u32 s{sSt}, 7")
        a(f"s_cselect_b32 s{sT0}, 7, 0")
        a(f"s_sub_u32 s{sSt}, s{sSt}, s{sT0}")
        if not self.rot:
            a(f"s_mov_b32 s{sSt}, 0")
        a(f"s_lshl_b32 s{sM}, s{sW}, 12")
        a("v_lshrrev_b32 v2, 3, v1")
        a("v_and_b32 v3, 7, v1")
        a("v_lshrrev_b32 v4, 4, v1")
        a("v_and_b32 v5, 15, v1")
        a("v_lshrrev_b32 v6, 2, v5")
        a("v_and_b32 v7, 3, v1")
        a("v_mul_u32_u24 v31, 896, v2")
        a("v_lshl_add_u32 v32, v3, 4, v31")
        a("v_lshrrev_b32 v33, 1, v1")
        a("v_mul_u32_u24 v33, 896, v33")
        a("v_and_b32 v34, 1, v1")
        a("v_lshl_add_u32 v33, v34, 4, v33")
        a(f"s_mul_i32 s{sT0}, s{sSi}, {64 * 896}")
        a(f"s_lshl_b32 s{sT1}, s{sDi}, 7")
        a(f"s_add_u32 s{sT0}, s{sT0}, s{sT1}")
        a(f"s_lshl_b32 s{sT1}, s{sW}, 5")
        a(f"s_add_u32 s{sT1}, s{sT1}, s{sT0}")
        a(f"s_sub_u32 s{sT1}, s{sT1}, {4 * 896}")
        a(f"v_add_u32 v33, s{sT1}, v33")
        a(f"s_mul_i32 s{sT1}, s{sW}, {8 * 896}")
        a(f"s_add_u32 s{sT0}, s{sT0}, s{sT1}")
        a(f"s_add_u32 s{sT1}, s{sT0}, {32 * 896}")
        a(f"s_lshl_b32 s{sT2}, s{sDi}, 6")
        a(f"s_lshl_b32 s{sT3}, s{sW}, 4")
        a(f"s_add_u32 s{sT2}, s{sT2}, s{sT3}")
        a(f"v_add_lshl_u32 v35, v5, s{sT2}, 3")
        a("v_xor_b32 v36, v3, v4")
        a("v_lshl_add_u32 v8, v36, 4, v31")
        a("v_xor_b32 v36, 4, v36")
        a("v_lshl_add_u32 v9, v36, 4, v31")
        a("v_add_u32 v9, 6144, v9")
        a("v_add_u32 v10, 12288, v8")
        a("v_add_u32 v11, 12288, v9")
        a("v_xor_b32 v36, v6, v4")
        a("v_lshl_add_u32 v36, v36, 2, v7")
        a("v_mul_u32_u24 v12, 3584, v4")
        a("v_lshl_add_u32 v12, v36, 4, v12")
        a("v_add_u32 v13, 13312, v12")
        a("v_add_u32 v14, 26624, v12")
        a("v_add_u32 v15, 39936, v12")
        a(f"s_lshl_b32 s{sXb}, s{sMi}, 7")
        a(f"s_lshl_b32 s{sT2}, s{sW}, 5")
        a(f"s_add_u32 s{sXb}, s{sXb}, s{sT2}")
        a(f"s_mul_i32 s{sXb}, s{sXb}, 896")
        a(f"s_add_u32 s{sXe}, s{sXb}, 896")
        a(f"s_lshl_b32 s{sT2}, s{sSt}, 7")
        a(f"s_add_u32 s{sXo}, s{sXb}, s{sT2}")
        a(f"s_mul_i32 s{sWb}, s{sW}, {16 * 3584}")
        a(f"s_lshl_b32 s{sT2}, s{sNi}, 8")
        a(f"s_add_u32 s{sWb}, s{sWb}, s{sT2}")
        a(f"s_mul_i32 s{sWo}, s{sSt}, {64 * 3584}")
        a(f"s_add_u32 s{sWo}, s{sWo}, s{sWb}")
        a(f"s_lshl_b32 s{sT2}, s{sW}, 10")
        a(f"s_lshl_b32 s{sT3}, s{sW}, 7")
        a("s_waitcnt lgkmcnt(0)")
        a(f"s_add_u32 m0, s{sT2}, {KT}")
        a("v_mov_b32 v49, 0")
        a(f"buffer_load_dwordx4 v32, {srd(SK)}, s{sT0} offen lds", tag="pa")
        a(f"s_add_u32 m0, s{sT2}, {KT + 4096}")
        a(f"s_lshl_b32 s4, s2, 2")
        a(f"buffer_load_dwordx4 v32, {srd(SK)}, s{sT1} offen lds", tag="pa")
        a(f"s_add_u32 m0, s{sT2}, {VT}")
        a(f"s_load_dword s{sD}, s[{sDp}:{sDp + 1}], s4")
        a(f"buffer_load_dwordx4 v32, {srd(SV)}, s{sT0} offen lds", tag="pa")
        a(f"s_add_u32 m0, s{sT2}, {VT + 4096}")
        a(f"s_lshl_b32 s{sC}, s2, 1")
        a(f"buffer_load_dwordx4 v32, {srd(SV)}, s{sT1} offen lds", tag="pa")
        a(f"s_add_u32 m0, s{sT3}, {HALO}")
        a("s_mov_b64 exec, 0xff")
        a(f"buffer_load_dwordx4 v33, {srd(SK)}, 0 offen lds", tag="pa")
        a("s_mov_b64 exec, -1")
        a(f"buffer_load_dwordx2 v[50:51], v35, {srd(SSH)}, 0 offen", tag="pa")
        a(f"buffer_load_dword v49, v49, {srd(SWS)}, 0 offen sc1", tag="pa")
        for s in range(4):
            self.issue_stage(s)
        self.stamp()
        a("v_lshrrev_b32 v36, 1, v2")
        a("v_and_b32 v36, 1, v36")
        a("v_lshlrev_b32 v36, 2, v36")
        a("v_xor_b32 v36, v36, v3")
        a("v_lshl_add_u32 v16, v36, 4, v31")
        a("v_add_u32 v17, 6144, v16")
        a("v_add_u32 v18, 12288, v16")
        a("v_add_u32 v19, 18432, v16")
        a("v_lshrrev_b32 v0, 5, v1")
        a("v_and_b32 v38, 1, v4")
        a("v_and_b32 v31, 31, v1")
        a(f"s_and_b32 s{sT0}, s{sW}, 1")
        a(f"s_lshr_b32 s{sT1}, s{sW}, 1")
        a(f"s_lshl_b32 s{sT2}, s{sT0}, 1")
        a(f"s_add_u32 s{sT2}, s{sT2}, s{sT1}")
        a("v_lshl_add_u32 v40, v0, 3, v6")
        a("v_lshlrev_b32 v40, 8, v40")
        a("v_lshl_add_u32 v40, v38, 5, v40")
        a("v_lshl_add_u32 v40, v7, 3, v40")
        a(f"v_add_u32 v40, {WR}, v40")
        a(f"v_xor_b32 v41, s{sT2}, v6")
        a("v_lshl_add_u32 v20, v41, 6, v40")
        a("v_xor_b32 v41, 1, v41")
        a("v_lshl_add_u32 v21, v41, 6, v40")
        a(f"s_lshl_b32 s{sT3}, s{sT1}, 13")
        a("v_lshlrev_b32 v40, 7, v31")
        a(f"v_add_u32 v40, s{sT3}, v40")
        a("v_bfe_u32 v41, v31, 1, 3")
        a("v_xor_b32 v41, v41, v0")
        for ks in range(4):
            if ks:
                a(f"v_xor_b32 v42, {2 * ks}, v41")
                a(f"v_lshl_add_u32 v{22 + ks}, v42, 4, v40")
            else:
                a("v_lshl_add_u32 v22, v41, 4, v40")
        a("v_lshl_add_u32 v40, v0, 2, v6")
        a("v_lshlrev_b32 v40, 7, v40")
        a(f"v_add_u32 v40, s{sM}, v40")
        a("v_and_b32 v41, 1, v7")
        a("v_lshl_add_u32 v40, v41, 5, v40")
        a("v_lshl_add_u32 v40, v38, 4, v40")
        a("v_lshrrev_b32 v41, 1, v7")
        a("v_lshl_add_u32 v40, v41, 3, v40")
        a("v_lshrrev_b32 v41, 1, v6")
        a(f"v_xor_b32 v41, s{sT0}, v41")
        a("v_lshl_add_u32 v26, v41, 6, v40")
        a("v_xor_b32 v41, 1, v41")
        a("v_lshl_add_u32 v27, v41, 6, v40")
        a("v_lshlrev_b32 v28, 4, v1")
        a(f"s_mul_i32 s{sT2}, s{sT1}, {CH_SZ}")
        a(f"s_lshl_b32 s{sT3}, s{sT0}, 8")
        a(f"s_add_u32 s{sT3}, s{sT3}, s{sT2}")
        a(f"s_add_u32 s{sT3}, s{sT3}, {CB + 8}")
        a(f"v_mul_u32_u24 v29, {HP}, v6")
        a("v_lshl_add_u32 v29, v7, 3, v29")
        a("v_lshl_add_u32 v29, v4, 4, v29")
        a(f"v_add_u32 v29, s{sT3}, v29")
        a(f"s_lshl_b32 s{sT3}, s{sT0}, 8")
        a(f"s_sub_u32 s{sT3}, s{sT2}, s{sT3}")
        a(f"s_add_u32 s{sT3}, s{sT3}, {CB + UOFF + 528 - 192}")
        a("v_lshlrev_b32 v30, 5, v5")
        a("v_lshlrev_b32 v40, 4, v4")
        a("v_sub_u32 v30, v30, v40")
        a(f"v_add_u32 v30, s{sT3}, v30")
        a("v_cmp_eq_u32 vcc, v5, v38")
        a("v_mov_b32 v40, 0x3f803f80")
        a("s_nop 0")
        a("v_cndmask_b32 v164, 0, v40, vcc")
        a("v_mov_b32 v165, v164")
        a("v_mov_b32 v166, v164")
        a("v_mov_b32 v167, v164")
        a(f"s_lshl_b32 s{sT2}, s{sMi}, 1")
        a(f"s_add_u32 s{sT2}, s{sT2}, s{sT1}")
        a(f"s_mul_i32 s{sT2}, s{sT2}, 224")
        a(f"s_lshl_b32 s{sT3}, s{sNi}, 3")
        a(f"s_add_u32 s{sT2}, s{sT2}, s{sT3}")
        a(f"s_lshl_b32 s{sT3}, s{sT0}, 2")
        a(f"s_add_u32 s{sT2}, s{sT2}, s{sT3}")
        a(f"s_lshl_b32 s{sT2}, s{sT2}, 10")
        a(f"s_add_u32 s{sT2}, s{sT2}, {HF}")
        a(f"s_lshl_b32 s{sT3}, s{sT1}, 11")
        a(f"s_add_u32 s{sHs}, s{sT2}, s{sT3}")
        a(f"s_add_u32 s{sHs + 1}, s{sHs}, 114688")
        a(f"s_xor_b32 s{sT3}, s{sT3}, 2048")
        a(f"s_add_u32 s{sHs + 2}, s{sT2}, s{sT3}")
        a(f"s_add_u32 s{sHs + 3}, s{sHs + 2}, 114688")
        a(f"s_mul_i32 s{sVg}, s{sJq}, 7")
        a(f"s_add_u32 s{sVg}, s{sVg}, 1")
        a(f"s_lshr_b32 s{sVg}, s{sVg}, 1")
        a(f"s_lshl_b32 s{sT2}, s{sJr}, 1")
        a(f"s_add_u32 s{sVg}, s{sVg}, s{sT2}")
        a(f"s_cmp_ge_u32 s{sVg}, 14")
        a(f"s_cselect_b32 s{sT2}, 14, 0")
        a(f"s_sub_u32 s{sVg}, s{sVg}, s{sT2}")
        if not self.rot:
            a(f"s_mov_b32 s{sVg}, 0")
        a(f"s_mul_i32 s{sVb}, s{sW}, {448 * 896}")
        a(f"s_lshl_b32 s{sT2}, s{sDi}, 7")
        a(f"s_add_u32 s{sVb}, s{sVb}, s{sT2}")
        a(f"s_add_u32 s{sVe}, s{sVb}, {448 * 896}")
        a(f"s_mul_i32 s{sVo}, s{sVg}, {32 * 896}")
        a(f"s_add_u32 s{sVo}, s{sVo}, s{sVb}")
        a(f"s_mul_i32 s{sHb}, s{sSi}, {224 * 1024}")
        a(f"s_mul_i32 s{sT2}, s{sW}, {28 * 1024}")
        a(f"s_add_u32 s{sHb}, s{sHb}, s{sT2}")
        a(f"s_add_u32 s{sHb}, s{sHb}, {HF}")
        a(f"s_add_u32 s{sHe}, s{sHb}, {28 * 1024}")
        a(f"s_lshl_b32 s{sHo}, s{sVg}, 11")
        a(f"s_add_u32 s{sHo}, s{sHo}, s{sHb}")

    def issue_stage(self, s):
        a = self.a
        slot = s % 4
        a(f"s_add_u32 m0, s{sM}, {XR + slot * 16384}")
        a("s_nop 0")
        for t in range(4):
            a(f"buffer_load_dwordx4 v{8 + t}, {srd(SQ)}, s{sXo} offen offset:{1024 * t} lds", tag=f"st{s}")
        a(f"s_add_u32 m0, s{sM}, {WR + slot * 16384}")
        a(f"s_add_u32 s{sXo}, s{sXo}, 128")
        for t in range(4):
            a(f"buffer_load_dwordx4 v{12 + t}, {srd(SW1)}, s{sWo} offen offset:{1024 * t} lds", tag=f"st{s}")
        if s < 6:
            a(f"s_add_u32 s{sWo}, s{sWo}, {64 * 3584}")
            a(f"s_cmp_eq_u32 s{sXo}, s{sXe}")
            a(f"s_cselect_b32 s{sXo}, s{sXb}, s{sXo}")
            a(f"s_cselect_b32 s{sWo}, s{sWb}, s{sWo}")

    def issue_w2(self, g):
        a = self.a
        slot = XSLOT_ORDER[g % 4]
        a(f"s_add_u32 m0, s{sM}, {XR + slot * 16384}")
        a("s_nop 0")
        for t in range(4):
            a(f"buffer_load_dwordx4 v{16 + t}, {srd(SW2)}, s{sVo} offen offset:{1024 * t} lds", tag=f"w2_{g}")
        if g < 13:
            a(f"s_add_u32 s{sVo}, s{sVo}, {32 * 896}")
            a(f"s_cmp_eq_u32 s{sVo}, s{sVe}")
            a(f"s_cselect_b32 s{sVo}, s{sVb}, s{sVo}")

    def w2_read_list(self, g):
        slot = XSLOT_ORDER[g % 4]
        out = []
        for n in range(4):
            ks = 2 * g + (n >> 1)
            for dt in range(2):
                r = (ks * 2 + dt) * 4 + 2 * (n & 1)
                out.append(f"ds_read_b64_tr_b16 {ar(r, 2)}, v{26 + dt} offset:{XR + slot * 16384 + n * 1024}")
        return out

    def w2_read(self, g):
        a = self.a
        a.wait_vm(f"w2_{g}")
        for t in self.w2_read_list(g):
            a(t, tag=f"w2r_{g}")

    def w2_refill(self, g):
        a = self.a
        if g + 4 < 14:
            a.wait_lg(f"w2r_{g}")
            self.issue_w2(g + 4)

    def phase_a(self):
        a = self.a
        a("v_lshl_add_u32 v40, v4, 4, v6")
        a("v_lshlrev_b32 v40, 7, v40")
        a("v_lshl_add_u32 v40, v7, 3, v40")
        a(f"s_lshl_b32 s{sT0}, s{sW}, 5")
        a(f"s_add_u32 s{sT0}, s{sT0}, {KT}")
        a(f"v_add_u32 v40, s{sT0}, v40")
        a("v_subrev_u32 v41, 512, v40")
        a(f"s_lshl_b32 s{sT0}, s{sW}, 7")
        a(f"s_add_u32 s{sT0}, s{sT0}, {HALO}")
        a("v_lshlrev_b32 v42, 5, v6")
        a("v_lshl_add_u32 v42, v7, 3, v42")
        a(f"v_add_u32 v42, s{sT0}, v42")
        a("v_cmp_eq_u32 vcc, 0, v4")
        a("s_nop 1")
        a("v_cndmask_b32 v41, v41, v42, vcc")
        a(f"s_lshl_b32 s{sT0}, s{sW}, 11")
        a(f"s_add_u32 s{sT0}, s{sT0}, {RL}")
        a("v_lshlrev_b32 v43, 7, v5")
        a("v_lshl_add_u32 v43, v4, 5, v43")
        a(f"v_add_u32 v43, s{sT0}, v43")
        a(f"v_add_u32 v44, s{sT0}, v28")
        a("v_lshlrev_b32 v45, 12, v2")
        a("v_lshl_add_u32 v45, v3, 4, v45")

    def phase_a_compute(self):
        a = self.a
        KR, VRw, KF = 200, 210, 220
        a(f"ds_read_b64_tr_b16 {vr(KR, 2)}, v41", tag="pk")
        for q in range(4):
            a(f"ds_read_b64_tr_b16 {vr(KR + 2 + 2 * q, 2)}, v40 offset:{512 * q}", tag="pk")
        for q in range(4):
            a(f"ds_read_b64_tr_b16 {vr(VRw + 2 * q, 2)}, v40 offset:{8192 + 512 * q}", tag="pv")
        a("v_lshlrev_b32 v52, 16, v50")
        a("v_and_b32 v53, 0xffff0000, v50")
        a("v_lshlrev_b32 v54, 16, v51")
        a("v_and_b32 v55, 0xffff0000, v51")
        a(f"s_mov_b32 s{sT1}, 0xffff0000")
        a.wait_lg("pk")
        for i in range(10):
            if i:
                a(f"v_lshlrev_b32 v{KF + 2 * i}, 16, v{KR + i}")
            a(f"v_and_b32 v{KF + 2 * i + 1}, s{sT1}, v{KR + i}")
        a.wait_lg("pv")
        T = 240
        for p in range(8):
            t0, t1 = 2 * p, 2 * p + 1
            x0, x1 = T + (p % 2) * 4, T + (p % 2) * 4 + 1
            u0, u1 = x0 + 2, x0 + 3
            a(f"v_mul_f32 v{x0}, v55, v{KF + 4 + t0 - 3}")
            a(f"v_mul_f32 v{x1}, v55, v{KF + 4 + t1 - 3}")
            a(f"v_lshlrev_b32 v{u0}, 16, v{VRw + p}")
            a(f"v_and_b32 v{u1}, s{sT1}, v{VRw + p}")
            for jj, wreg in ((2, 54), (1, 53), (0, 52)):
                a(f"v_fmac_f32 v{x0}, v{wreg}, v{KF + 4 + t0 - jj}")
                a(f"v_fmac_f32 v{x1}, v{wreg}, v{KF + 4 + t1 - jj}")
            a(f"v_mul_f32 v{x0}, v{x0}, v{u0}")
            a(f"v_mul_f32 v{x1}, v{x1}, v{u1}")
            a(f"v_cvt_pk_bf16_f32 v{56 + p}, v{x0}, v{x1}")
        a("ds_write_b128 v43, v[56:59]", tag="pw")
        a("ds_write_b128 v43, v[60:63] offset:16", tag="pw")
        a(f"s_lshl_b32 s{sT0}, s{sDi}, 2")
        a(f"s_add_u32 s{sT0}, s{sT0}, s{sW}")
        a(f"s_lshl_b32 s{sT0}, s{sT0}, 16")
        a(f"s_lshl_b32 s{sT1}, s{sSi}, 7")
        a(f"s_add_u32 s{sT0}, s{sT0}, s{sT1}")
        a(f"s_add_u32 s{sT0}, s{sT0}, {KVT}")
        a(f"s_add_u32 s{sT1}, s{sT0}, {8 * 4096}")
        a.wait_lg("pw")
        a("ds_read_b128 v[56:59], v44", tag="pr0")
        a("ds_read_b128 v[60:63], v44 offset:1024", tag="pr1")
        a.wait_lg("pr0")
        a(f"buffer_store_dwordx4 v[56:59], v45, {srd(SWS)}, s{sT0} offen sc1", tag="kvs")
        a.wait_lg("pr1")
        a(f"buffer_store_dwordx4 v[60:63], v45, {srd(SWS)}, s{sT1} offen sc1", tag="kvs")

    def put_flag(self, soff_expr_emit):
        a = self.a
        soff_expr_emit()
        a(f"v_mov_b32 v2, s{sTag}")
        a("v_mov_b32 v3, 0")
        a("s_mov_b64 exec, 1")
        a(f"buffer_store_dword v2, v3, {srd(SWS)}, s{sT0} offen sc1", tag="flag")
        a("s_mov_b64 exec, -1")

    def g1_reads(self, s, ks):
        slot = s % 4
        buf = (s * 4 + ks) & 1
        A0 = 128 + buf * 8
        B0 = 144 + buf * 8
        out = []
        for ap in range(2):
            for sec in range(2):
                out.append(f"ds_read_b64_tr_b16 {vr(A0 + ap * 4 + sec * 2, 2)}, v{20 + ap} offset:{slot * 16384 + (16 * ks + 4 * sec) * 256}")
        for b in range(2):
            out.append(f"ds_read_b128 {vr(B0 + b * 4, 4)}, v{22 + ks} offset:{slot * 16384 + b * 4096}")
        return [out[0], out[1], out[4], out[5], out[2], out[3]]

    def g1_mfma(self, s, ks):
        buf = (s * 4 + ks) & 1
        A0 = 128 + buf * 8
        B0 = 144 + buf * 8
        first = (s == 0 and ks == 0)
        out = []
        c = "0" if first else "v[160:163]"
        out.append(f"v_mfma_f32_16x16x32_bf16 v[160:163], {vr(A0, 4)}, v[164:167], {c}")
        for ap in range(2):
            for b in range(2):
                acc = 64 + (ap * 2 + b) * 16
                c = "0" if first else vr(acc, 16)
                out.append(f"v_mfma_f32_32x32x16_bf16 {vr(acc, 16)}, {vr(A0 + ap * 4, 4)}, {vr(B0 + b * 4, 4)}, {c}")
        return out

    def gemm1(self):
        a = self.a
        prev = None
        for s in range(7):
            a.wait_vm(f"st{s}")
            a.wait_lg_all()
            a("s_barrier")
            if s == 0:
                self.stamp()
                a(f"v_readfirstlane_b32 s{sTag}, v49")
                a("s_nop 0")
                a(f"s_add_u32 s{sTag}, s{sTag}, 1")
            rd = self.g1_reads(s, 0)
            for t in rd:
                a(t, tag=f"f{s}_0")
            if s == 0:
                self.phase_a_compute()
            if 1 <= s <= 3:
                self.issue_stage(s + 3)
            if s == 3:
                a.wait_vm("kvs")

                def e():
                    a(f"s_lshl_b32 s{sT0}, s{sDi}, 2")
                    a(f"s_add_u32 s{sT0}, s{sT0}, s{sW}")
                    a(f"s_lshl_b32 s{sT0}, s{sT0}, 5")
                    a(f"s_add_u32 s{sT0}, s{sT0}, s{sSi}")
                    a(f"s_lshl_b32 s{sT0}, s{sT0}, 2")
                    a(f"s_add_u32 s{sT0}, s{sT0}, {FLG_KV}")
                self.put_flag(e)
            if s == 4:
                self.issue_hcopies()
                self.issue_w2(0)
            if s == 5:
                self.issue_w2(1)
            if s == 6:
                self.issue_stats()
                self.issue_w2(2)
            if prev is not None:
                for t in self.g1_mfma(*prev):
                    a(t)
            for ks in range(4):
                if ks < 3:
                    nxt = self.g1_reads(s, ks + 1)
                    a.wait_lg(f"f{s}_{ks}")
                    mf = self.g1_mfma(s, ks)
                    a(mf[0])
                    a(mf[1])
                    a(nxt[0], tag=f"f{s}_{ks + 1}")
                    a(nxt[1], tag=f"f{s}_{ks + 1}")
                    a(mf[2])
                    a(nxt[2], tag=f"f{s}_{ks + 1}")
                    a(nxt[3], tag=f"f{s}_{ks + 1}")
                    a(mf[3])
                    a(nxt[4], tag=f"f{s}_{ks + 1}")
                    a(nxt[5], tag=f"f{s}_{ks + 1}")
                    a(mf[4])
                else:
                    prev = (s, 3)
        a.wait_lg_all()
        mf = self.g1_mfma(6, 3)
        for t in mf[:3]:
            a(t)
        a(f"s_and_b32 s{sT0}, s{sW}, 1")
        a(f"s_lshr_b32 s{sT1}, s{sW}, 1")
        a(f"s_lshl_b32 s{sT0}, s{sT0}, 8")
        a(f"s_lshl_b32 s{sT1}, s{sT1}, 7")
        a(f"s_add_u32 s{sT0}, s{sT0}, {CS}")
        a(f"s_add_u32 s{sT2}, s{sT0}, s{sT1}")
        a("v_lshlrev_b32 v46, 6, v5")
        a("v_lshl_add_u32 v46, v4, 4, v46")
        a(f"v_add_u32 v46, s{sT2}, v46")
        a("v_lshlrev_b32 v47, 4, v0")
        a(f"v_add_u32 v47, s{sT2}, v47")
        a("v_xor_b32 v48, 128, v47")
        a("s_mov_b32 exec_lo, 0x00030003")
        a("s_mov_b32 exec_hi, 0x00030003")
        a("ds_write_b128 v46, v[160:163]", tag="csw")
        a("s_mov_b64 exec, -1")
        a(mf[3])
        a.wait_lg_all()
        a("s_barrier")
        for ap in range(2):
            for q in range(4):
                a(f"ds_read_b128 {vr(168 + ap * 16 + q * 4, 4)}, v{47 + ap} offset:{32 * q}", tag=f"cs{ap}")
        a(mf[4])
        self.issue_w2(3)
        self.stamp()

    def issue_hcopies(self):
        a = self.a
        a(f"s_mul_i32 s{sT0}, s{sW}, {HP}")
        a(f"s_add_u32 s{sT0}, s{sT0}, {CB + 64}")
        a(f"s_lshl_b32 s{sT1}, s{sC}, 12")
        a(f"s_add_u32 s{sT1}, s{sT1}, 32")
        a(f"s_sub_u32 s{sT1}, s{sT1}, s{sW}")
        a(f"s_sub_u32 s{sT1}, s{sT1}, s{sW}")
        for ch in range(2):
            a(f"s_add_u32 m0, s{sT0}, {ch * CH_SZ}")
            if ch:
                a(f"s_add_u32 s{sT1}, s{sT1}, 4096")
            else:
                a("s_nop 0")
            for t in range(4):
                a(f"buffer_load_dwordx4 v28, {srd(SH)}, s{sT1} offen offset:{1024 * t} lds", tag="hc")
        a(f"s_add_u32 s{sT1}, s{sW}, 16")
        a(f"v_subrev_u32 v2, s{sT1}, v31")
        a(f"v_add_u32 v3, s{sC}, v0")
        a("v_lshlrev_b32 v3, 12, v3")
        a("v_lshl_add_u32 v3, v2, 1, v3")
        a("v_cmp_gt_i32 vcc, 0, v2")
        a("v_mov_b32 v2, -16")
        a("s_nop 0")
        a("v_cndmask_b32 v3, v3, v2, vcc")
        a(f"buffer_load_ushort v12, v3, {srd(SH)}, 0 offen", tag="hc")

    def issue_stats(self):
        a = self.a
        a(f"s_lshl_b32 s{sT0}, s{sMi}, 1")
        a(f"s_lshr_b32 s{sT1}, s{sW}, 1")
        a(f"s_add_u32 s{sT0}, s{sT0}, s{sT1}")
        a(f"s_lshl_b32 s{sT0}, s{sT0}, 9")
        a(f"s_add_u32 s74, s{sT0}, {STATS}")
        a("v_lshlrev_b32 v13, 3, v31")
        a(f"buffer_load_dwordx2 v[200:201], v13, {srd(SWS)}, s74 offen sc1", tag="stat")
        a(f"buffer_load_dwordx2 v[202:203], v13, {srd(SWS)}, s74 offen offset:256 sc1", tag="stat")

    def silu(self):
        a = self.a
        a.wait_vm("stat")
        Lok = a.newlabel("L_stok")
        a(f"v_cmp_ne_u32 vcc, s{sTag}, v201")
        a(f"v_cmp_ne_u32 s[4:5], s{sTag}, v203")
        a("s_nop 1")
        a("s_or_b64 vcc, vcc, s[4:5]")
        a(f"s_cbranch_vccz {Lok}")
        save = list(a.vm)
        self.poll(200, 13, "s74", width=2)
        a("s_add_u32 s74, s74, 256")
        self.poll(202, 13, "s74", width=2)
        a.vm = save
        a.label(Lok)
        a(f"s_mov_b32 s{sT1}, 0xffff0000")
        a(f"s_mov_b32 s{sT0}, 0x{LOG2E | 0x80000000:x}")
        for b in range(2):
            a(f"v_lshlrev_b32 v{224 + 2 * b}, 16, v{200 + 2 * b}")
            a(f"v_and_b32 v{216 + 2 * b}, s{sT1}, v{200 + 2 * b}")
            a(f"v_rcp_f32 v{220 + 2 * b}, v{224 + 2 * b}")
            a(f"v_xor_b32 v{216 + 2 * b}, 0x80000000, v{216 + 2 * b}")
            a(f"v_mul_f32 v{220 + 2 * b}, s{sT0}, v{220 + 2 * b}")
        a(f"s_lshr_b32 s{sT0}, s{sC}, 4")
        a(f"s_lshl_b32 s{sT0}, s{sT0}, 7")
        a(f"s_add_u32 s75, s{sT0}, {FLG_KV}")
        a("v_lshlrev_b32 v15, 2, v31")
        a(f"buffer_load_dword v14, v15, {srd(SWS)}, s75 offen sc1", tag="kvp")
        grp = 0
        for ap in range(2):
            a.wait_lg(f"cs{ap}")
            for b in range(2):
                acc = 64 + (ap * 2 + b) * 16
                for half in range(2):
                    r0 = acc + half * 8
                    c0 = 168 + ap * 16 + half * 8
                    o = 40 + (grp % 6) * 4
                    T = 208
                    for p in range(4):
                        a(f"v_pk_fma_f32 {vr(r0 + 2 * p, 2)}, {vr(c0 + 2 * p, 2)}, {vr(216 + 2 * b, 2)}, {vr(r0 + 2 * p, 2)} op_sel_hi:[1,0,1]")
                    for p in range(4):
                        a(f"v_pk_mul_f32 {vr(T + 2 * p, 2)}, {vr(r0 + 2 * p, 2)}, {vr(220 + 2 * b, 2)} op_sel_hi:[1,0]")
                    for p in range(8):
                        a(f"v_exp_f32 v{T + p}, v{T + p}")
                    for p in range(4):
                        a(f"v_pk_fma_f32 {vr(T + 2 * p, 2)}, {vr(T + 2 * p, 2)}, {vr(224 + 2 * b, 2)}, {vr(224 + 2 * b, 2)} op_sel_hi:[1,0,0]")
                    for p in range(8):
                        a(f"v_rcp_f32 v{T + p}, v{T + p}")
                    for p in range(4):
                        a(f"v_pk_mul_f32 {vr(r0 + 2 * p, 2)}, {vr(r0 + 2 * p, 2)}, {vr(T + 2 * p, 2)}")
                    for p in range(4):
                        a(f"v_cvt_pk_bf16_f32 v{o + p}, v{r0 + 2 * p}, v{r0 + 2 * p + 1}")
                    a(f"buffer_store_dwordx4 {vr(o, 4)}, v28, {srd(SWS)}, s{sHs + ap * 2 + b} offen offset:{1024 * half} sc1", tag="hs")
                    if grp == 0:
                        self.w2_read(0)
                    if grp == 1:
                        self.w2_refill(0)
                        self.w2_read(1)
                    if grp == 2:
                        self.w2_refill(1)
                    if grp == 3:
                        self.try_u()
                    grp += 1
        self.stamp()

    def issue_u(self, tag):
        a = self.a
        a(f"s_lshr_b32 s{sT0}, s{sW}, 1")
        a(f"s_and_b32 s{sT1}, s{sW}, 1")
        a(f"s_lshl_b32 s{sT1}, s{sT1}, 11")
        a(f"s_mul_i32 s{sT2}, s{sT0}, {CH_SZ}")
        a(f"s_add_u32 s{sT2}, s{sT2}, s{sT1}")
        a(f"s_add_u32 m0, s{sT2}, {CB + UOFF + 512}")
        a(f"s_add_u32 s{sT0}, s{sT0}, s{sC}")
        a(f"s_lshl_b32 s{sT0}, s{sT0}, 12")
        a(f"s_add_u32 s{sT0}, s{sT0}, s{sT1}")
        a(f"s_add_u32 s{sT0}, s{sT0}, {KVT}")
        for t in range(2):
            a(f"buffer_load_dwordx4 v28, {srd(SWS)}, s{sT0} offen offset:{1024 * t} sc1 lds", tag=tag)

    def try_u(self):
        a = self.a
        a.wait_vm("kvp")
        L = a.newlabel("L_nou")
        a(f"v_cmp_ne_u32 vcc, s{sTag}, v14")
        a("s_mov_b32 s6, 0")
        a("s_nop 0")
        a(f"s_cbranch_vccnz {L}")
        self.issue_u("opt:u")
        a("s_mov_b32 s6, 1")
        a.label(L)

    def conv_reads(self, rp):
        buf = rp & 1
        A0 = 64 + buf * 32
        B0 = 128 + buf * 32
        la, lb = [], []
        for J in range(8):
            off = 64 * (8 * J + rp)
            la.append([f"ds_read_b64_tr_b16 {vr(A0 + 4 * J, 2)}, v29 offset:{off + 8}",
                       f"ds_read_b64_tr_b16 {vr(A0 + 4 * J + 2, 2)}, v29 offset:{off}"])
        for d in range(8):
            lb.append(f"ds_read_b128 {vr(B0 + 4 * d, 4)}, v30 offset:{512 * d + 64 * (3 - rp)}")
        seq = []
        for i in range(8):
            seq.append((la[i][0], f"cA{rp}_{i}"))
            seq.append((la[i][1], f"cA{rp}_{i}"))
            seq.append((lb[i], f"cB{rp}_{i}"))
        return seq

    def conv(self):
        a = self.a
        self.w2_read(2)
        a(f"s_mul_i32 s{sT0}, s{sW}, {HP}")
        a(f"s_add_u32 s{sT0}, s{sT0}, {CB}")
        a(f"v_mul_u32_u24 v2, {CH_SZ}, v0")
        a("v_lshl_add_u32 v2, v31, 1, v2")
        a(f"v_add_u32 v2, s{sT0}, v2")
        a(f"s_lshr_b32 s{sT0}, s{sW}, 1")
        a(f"s_mul_i32 s{sT0}, s{sT0}, {CH_SZ}")
        a(f"s_add_u32 s{sT0}, s{sT0}, {CB + UOFF}")
        a("v_lshlrev_b32 v3, 3, v1")
        a(f"v_add_u32 v3, s{sT0}, v3")
        a("v_mov_b32 v32, 0")
        a("v_mov_b32 v33, 0")
        a.wait_vm("hc")
        a("ds_write_b16 v2, v12", tag="fix")
        a("ds_write_b64 v3, v[32:33]", tag="fix")
        self.w2_refill(2)
        L = a.newlabel("L_haveu")
        a("s_cmp_eq_u32 s6, 1")
        a(f"s_cbranch_scc1 {L}")
        save = list(a.vm)
        self.poll(14, 15, "s75")
        self.issue_u("x")
        a.wait_vm_all()
        a.vm = save
        a.label(L)
        a.wait_vm("opt:u", "hc")
        a.wait_lg_all()
        a("s_barrier")
        self.stamp()
        for t, tg in self.conv_reads(0):
            a(t, tag=tg)
        w2g = 3
        for rp in range(4):
            buf = rp & 1
            A0 = 64 + buf * 32
            B0 = 128 + buf * 32
            order = []
            for m in range(8):
                for J in range(m + 1):
                    if J + m <= 7:
                        order.append((J, m))
                for d in range(m):
                    if m + d <= 7:
                        order.append((m, d))
            assert len(order) == 36
            fill = []
            if rp < 3:
                fill += [("lds", t, tg) for t, tg in self.conv_reads(rp + 1)]
            seen = set()
            acts = {}
            if rp == 0:
                acts[30] = ["hflag"]
            for k, pos in enumerate((2, 14, 26)):
                acts.setdefault(pos, []).append("w2r")
                acts.setdefault(pos + 6, []).append("w2f")
            fi = 0
            for n, (J, d) in enumerate(order):
                if rp == 0:
                    a.wait_lg(f"cA0_{J}", f"cB0_{d}")
                elif n == 0:
                    a.wait_lg(*[f"cA{rp}_{i}" for i in range(8)], *[f"cB{rp}_{i}" for i in range(8)])
                i = J + d
                acc = 224 + 4 * i
                c = ar(acc, 4) if (rp > 0 or i in seen) else "0"
                seen.add(i)
                a(f"v_mfma_f32_16x16x32_bf16 {ar(acc, 4)}, {vr(A0 + 4 * J, 4)}, {vr(B0 + 4 * d, 4)}, {c}")
                start = 8 if rp == 0 else 0
                if n >= start and fi < len(fill):
                    a(fill[fi][1], tag=fill[fi][2])
                    fi += 1
                for act in acts.get(n, []):
                    if act == "w2r" and w2g < 14:
                        self.w2_read(w2g)
                    elif act == "w2f" and w2g < 14:
                        self.w2_refill(w2g)
                        w2g += 1
                    elif act == "hflag":
                        a.wait_vm("hs")

                        def e():
                            a(f"s_lshl_b32 s{sT0}, s{sMi}, 1")
                            a(f"s_lshr_b32 s{sT1}, s{sW}, 1")
                            a(f"s_add_u32 s{sT0}, s{sT0}, s{sT1}")
                            a(f"s_lshl_b32 s{sT0}, s{sT0}, 4")
                            a(f"s_add_u32 s{sT0}, s{sT0}, s{sNi}")
                            a(f"s_lshl_b32 s{sT0}, s{sT0}, 1")
                            a(f"s_and_b32 s{sT1}, s{sW}, 1")
                            a(f"s_add_u32 s{sT0}, s{sT0}, s{sT1}")
                            a(f"s_lshl_b32 s{sT0}, s{sT0}, 2")
                            a(f"s_add_u32 s{sT0}, s{sT0}, {FLG_H}")
                        self.put_flag(e)
            while fi < len(fill):
                a(fill[fi][1], tag=fill[fi][2])
                fi += 1
        assert w2g == 14, w2g
        a(f"s_lshl_b32 s{sT0}, s{sW}, 13")
        a(f"s_add_u32 s{sT0}, s{sT0}, {CRED}")
        a(f"v_add_u32 v2, s{sT0}, v28")
        a(f"s_and_b32 s{sT1}, s{sW}, 1")
        a(f"s_lshr_b32 s{sT2}, s{sW}, 1")
        a(f"s_lshl_b32 s{sT0}, s{sT2}, 14")
        a(f"s_lshl_b32 s{sT3}, s{sT1}, 12")
        a(f"s_add_u32 s{sT0}, s{sT0}, s{sT3}")
        a(f"s_add_u32 s{sT0}, s{sT0}, {CRED}")
        a(f"v_add_u32 v3, s{sT0}, v28")
        a(f"s_mul_i32 s{sT0}, s{sT2}, {CH_SZ}")
        a(f"s_lshl_b32 s{sT3}, s{sT1}, 11")
        a(f"s_add_u32 s{sT0}, s{sT0}, s{sT3}")
        a(f"s_add_u32 s{sT0}, s{sT0}, {CB + UOFF + 512}")
        a("v_lshlrev_b32 v32, 5, v5")
        a("v_lshl_add_u32 v32, v4, 3, v32")
        a(f"v_add_u32 v33, s{sT0}, v32")
        for i in range(8):
            a(f"ds_write_b128 v2, {ar(224 + 4 * i, 4)} offset:{1024 * i}", tag="crw")
        for i in range(4):
            a(f"ds_read_b64 {vr(96 + 2 * i, 2)}, v33 offset:{512 * i}", tag="cu")
        a(f"s_lshl_b32 s{sT3}, s{sD}, 16")
        a(f"s_and_b32 s{sD}, s{sD}, 0xffff0000")
        a(f"s_cmp_eq_u32 s{sT2}, 0")
        a(f"s_cselect_b32 s{sD}, s{sT3}, s{sD}")
        a(f"s_add_u32 s{sT0}, s{sC}, s{sT2}")
        a(f"s_lshl_b32 s7, s{sT0}, 1")
        a(f"s_add_u32 s7, s7, s{sT1}")
        a(f"s_lshl_b32 s{sT0}, s{sT0}, 12")
        a(f"s_lshl_b32 s{sT1}, s{sT1}, 11")
        a(f"s_add_u32 s{sT0}, s{sT0}, s{sT1}")
        a(f"s_add_u32 s{sT0}, s{sT0}, {YT}")
        a(f"s_mov_b32 s{sT1}, 0xffff0000")
        a.wait_lg_all()
        a("s_barrier")
        for i in range(4):
            a(f"ds_read_b128 {vr(64 + 4 * i, 4)}, v3 offset:{1024 * i}", tag=f"cr{i}")
            a(f"ds_read_b128 {vr(80 + 4 * i, 4)}, v3 offset:{8192 + 1024 * i}", tag=f"cr{i}")
        for i in range(4):
            a(f"v_lshlrev_b32 v104, 16, v{96 + 2 * i}")
            a(f"v_and_b32 v105, s{sT1}, v{96 + 2 * i}")
            a(f"v_lshlrev_b32 v106, 16, v{97 + 2 * i}")
            a(f"v_and_b32 v107, s{sT1}, v{97 + 2 * i}")
            a.wait_lg(f"cr{i}")
            a(f"v_pk_add_f32 {vr(64 + 4 * i, 2)}, {vr(64 + 4 * i, 2)}, {vr(80 + 4 * i, 2)}")
            a(f"v_pk_add_f32 {vr(66 + 4 * i, 2)}, {vr(66 + 4 * i, 2)}, {vr(82 + 4 * i, 2)}")
            for jj in range(4):
                a(f"v_fmac_f32 v{64 + 4 * i + jj}, s{sD}, v{104 + jj}")
            a(f"v_cvt_pk_bf16_f32 v{108 + 2 * i}, v{64 + 4 * i}, v{65 + 4 * i}")
            a(f"v_cvt_pk_bf16_f32 v{109 + 2 * i}, v{66 + 4 * i}, v{67 + 4 * i}")
            a(f"buffer_store_dwordx2 {vr(108 + 2 * i, 2)}, v32, {srd(SWS)}, s{sT0} offen offset:{512 * i} sc1", tag="ys")
        self.stamp()

    def h_load(self, g, part):
        a = self.a
        for st in range(2):
            n = (2 * g + part) * 2 + st
            r = 32 + 4 * (n % 40)
            a(f"buffer_load_dwordx4 {vr(r, 4)}, v{8 + st}, {srd(SWS)}, s{sHo} offen offset:{1024 * part} sc1", tag=f"h{2 * g + part}")
        if part == 1 and g < 13:
            a(f"s_add_u32 s{sHo}, s{sHo}, 2048")
            a(f"s_cmp_eq_u32 s{sHo}, s{sHe}")
            a(f"s_cselect_b32 s{sHo}, s{sHb}, s{sHo}")

    def gemm2(self):
        a = self.a
        a(f"s_and_b32 s{sT0}, s{sW}, 1")
        a(f"s_lshr_b32 s{sT1}, s{sW}, 1")
        a(f"s_lshl_b32 s{sT2}, s{sSi}, 1")
        a(f"s_add_u32 s4, s{sT2}, s{sT1}")
        a(f"s_lshl_b32 s{sT2}, s{sDi}, 1")
        a(f"s_add_u32 s5, s{sT2}, s{sT0}")
        a(f"s_mul_i32 s74, s4, {32 * 896}")
        a(f"s_lshl_b32 s{sT2}, s5, 6")
        a(f"s_add_u32 s74, s74, s{sT2}")
        a("v_lshrrev_b32 v2, 2, v1")
        a("v_mul_u32_u24 v10, 896, v2")
        a("v_lshl_add_u32 v10, v7, 4, v10")
        a("v_lshlrev_b32 v11, 12, v2")
        a("v_lshl_add_u32 v11, v7, 4, v11")
        a(f"s_add_u32 s{sT2}, s74, {16 * 896 - 1024}")
        a(f"s_add_u32 m0, s{sM}, {XR}")
        a(f"s_mul_i32 s{sT3}, s{sT1}, 114688")
        a(f"buffer_load_dwordx4 v10, {srd(SQ)}, s74 offen lds", tag="xt")
        a(f"buffer_load_dwordx4 v10, {srd(SQ)}, s{sT2} offen offset:1024 lds", tag="xt")
        a(f"v_add_u32 v8, s{sT3}, v28")
        a(f"s_sub_u32 s{sT3}, 114688, s{sT3}")
        a(f"v_add_u32 v9, s{sT3}, v28")
        a(f"s_lshl_b32 s{sT2}, s4, 8")
        a(f"s_add_u32 s75, s{sT2}, {STATS}")
        a("v_lshlrev_b32 v12, 3, v31")
        a(f"buffer_load_dwordx2 v[14:15], v12, {srd(SWS)}, s75 offen sc1", tag="st2")
        a(f"s_lshl_b32 s{sT0}, s{sSi}, 5")
        a(f"s_mul_i32 s{sT1}, s{sW}, 7")
        a(f"s_add_u32 s{sT0}, s{sT0}, s{sT1}")
        a(f"s_lshl_b32 s{sT0}, s{sT0}, 2")
        a(f"s_add_u32 s6, s{sT0}, {FLG_H}")
        a("v_min_u32 v13, 6, v1")
        a("v_lshlrev_b32 v13, 2, v13")
        self.poll(16, 13, "s6")
        self.stamp()

        def e():
            a(f"s_lshl_b32 s{sT0}, s7, 2")
            a(f"s_add_u32 s{sT0}, s{sT0}, {FLG_Y}")
        for g in range(10):
            self.h_load(g, 0)
            self.h_load(g, 1)
            if g == 0:
                self.put_flag(e)
        a(f"s_lshl_b32 s{sT0}, s5, 8")
        a(f"s_lshr_b32 s{sT1}, s{sSi}, 4")
        a(f"s_lshl_b32 s{sT1}, s{sT1}, 2")
        a(f"s_add_u32 s{sT0}, s{sT0}, s{sT1}")
        a(f"s_add_u32 s6, s{sT0}, {FLG_Y}")
        a.wait_lg_all()
        for ks in range(28):
            a.wait_vm(f"h{ks}")
            for st in range(2):
                n = ks * 2 + st
                r = 32 + 4 * (n % 40)
                for dt in range(2):
                    acc = 192 + (st * 2 + dt) * 16
                    c = "0" if ks == 0 else vr(acc, 16)
                    a(f"v_mfma_f32_32x32x16_bf16 {vr(acc, 16)}, {ar((ks * 2 + dt) * 4, 4)}, {vr(r, 4)}, {c}")
            if ks + 20 < 28:
                self.h_load((ks + 20) // 2, (ks + 20) % 2)
        self.stamp()
        for tau in range(1, 4):
            a(f"s_xor_b32 s{sT0}, s{sW}, {tau}")
            a(f"s_lshl_b32 s{sT0}, s{sT0}, 12")
            a(f"s_add_u32 s{sT0}, s{sT0}, {REDP[tau - 1]}")
            a(f"v_add_u32 v{16 + tau}, s{sT0}, v28")
        a(f"v_add_u32 v20, s{sM}, v28")
        self.poll(16, 12, "s6")
        a(f"s_lshl_b32 s{sT0}, s5, 17")
        a(f"s_lshl_b32 s{sT1}, s4, 6")
        a(f"s_add_u32 s{sT0}, s{sT0}, s{sT1}")
        a(f"s_add_u32 s{sT0}, s{sT0}, {YT}")
        a(f"s_add_u32 m0, s{sM}, {XR + 16384}")
        a(f"s_add_u32 s{sT1}, s{sT0}, {16 * 4096 - 1024}")
        a(f"buffer_load_dwordx4 v11, {srd(SWS)}, s{sT0} offen sc1 lds", tag="ya")
        a(f"buffer_load_dwordx4 v11, {srd(SWS)}, s{sT1} offen offset:1024 sc1 lds", tag="ya")
        for tau in range(1, 4):
            for q in range(4):
                a(f"ds_write_b128 v{16 + tau}, {vr(192 + tau * 16 + 4 * q, 4)} offset:{1024 * q}", tag="rw")
        a("v_lshlrev_b32 v21, 6, v31")
        a("v_lshl_add_u32 v21, v0, 5, v21")
        a(f"v_add_u32 v21, s{sM}, v21")
        a("v_lshl_add_u32 v22, v0, 4, v6")
        a("v_lshlrev_b32 v22, 6, v22")
        a("v_and_b32 v2, 1, v4")
        a("v_lshl_add_u32 v22, v2, 5, v22")
        a("v_lshl_add_u32 v22, v7, 3, v22")
        a(f"v_add_u32 v22, s{sM}, v22")
        a("ds_read_b128 v[32:35], v21", tag="xr")
        a("ds_read_b128 v[36:39], v21 offset:16", tag="xr")
        Lok = a.newlabel("L_st2ok")
        a(f"v_cmp_ne_u32 vcc, s{sTag}, v15")
        a("s_nop 1")
        a(f"s_cbranch_vccz {Lok}")
        save = list(a.vm)
        self.poll(14, 12, "s75", width=2)
        a.vm = save
        a.label(Lok)
        a(f"s_mov_b32 s{sT1}, 0xffff0000")
        a("v_lshlrev_b32 v24, 16, v14")
        a(f"v_and_b32 v26, s{sT1}, v14")
        a("v_rcp_f32 v24, v24")
        a("v_mul_u32_u24 v23, 896, v31")
        a("v_lshl_add_u32 v23, v0, 5, v23")
        a.wait_lg_all()
        a("s_barrier")
        for tau in range(3):
            a(f"v_add_u32 v{17 + tau}, {REDP[tau]}, v20")
        for tau in range(3):
            for q in range(4):
                a(f"ds_read_b128 {vr(64 + tau * 16 + 4 * q, 4)}, v{17 + tau} offset:{1024 * q}", tag=f"rr{tau}")
        for i in range(8):
            a(f"v_lshlrev_b32 v{128 + 2 * i}, 16, v{32 + i}")
            a(f"v_and_b32 v{129 + 2 * i}, s{sT1}, v{32 + i}")
        for i in range(8):
            a(f"v_pk_add_f32 {vr(144 + 2 * i, 2)}, {vr(128 + 2 * i, 2)}, v[26:27] op_sel_hi:[1,0] neg_lo:[0,1] neg_hi:[0,1]")
        for i in range(8):
            a(f"v_pk_mul_f32 {vr(144 + 2 * i, 2)}, {vr(144 + 2 * i, 2)}, v[24:25] op_sel_hi:[1,0]")
        for i in range(8):
            a(f"v_pk_add_f32 {vr(192 + 2 * i, 2)}, {vr(192 + 2 * i, 2)}, {vr(128 + 2 * i, 2)}")
        a.wait_vm("ya")
        for q in range(4):
            a(f"ds_read_b64_tr_b16 {vr(40 + 2 * q, 2)}, v22 offset:{16384 + 256 * q}", tag="yr")
        for tau in range(3):
            a.wait_lg(f"rr{tau}")
            for i in range(8):
                a(f"v_pk_add_f32 {vr(192 + 2 * i, 2)}, {vr(192 + 2 * i, 2)}, {vr(64 + tau * 16 + 2 * i, 2)}")
        a.wait_lg("yr")
        for i in range(8):
            a(f"v_lshlrev_b32 v{128 + 2 * i}, 16, v{40 + i}")
            a(f"v_and_b32 v{129 + 2 * i}, s{sT1}, v{40 + i}")
        for i in range(8):
            a(f"v_pk_fma_f32 {vr(192 + 2 * i, 2)}, {vr(144 + 2 * i, 2)}, {vr(128 + 2 * i, 2)}, {vr(192 + 2 * i, 2)}")
        for i in range(8):
            a(f"v_cvt_pk_bf16_f32 v{48 + i}, v{192 + 2 * i}, v{193 + 2 * i}")
        a(f"buffer_store_dwordx4 v[48:51], v23, {srd(SOUT)}, s74 offen", tag="o")
        a(f"buffer_store_dwordx4 v[52:55], v23, {srd(SOUT)}, s74 offen offset:16", tag="o")
        if self.diag:
            a.wait_vm_all()
        self.stamp()
        self.store_stamps()
        a("s_endpgm")

    def helper(self):
        a = self.a
        a.vm = []
        a.lg = []
        n0 = self.nstamp
        self.nstamp = 1
        a.label("L_helper")
        a(f"s_getpc_b64 s[{sCode}:{sCode + 1}]")
        a.label("L_pc")
        a(f"s_sub_u32 s{sCode}, s{sCode}, L_pc-{KN}")
        a(f"s_subb_u32 s{sCode + 1}, s{sCode + 1}, 0")
        a(f"s_mov_b32 s{sCode + 2}, L_codeend-{KN}")
        a(f"s_mov_b32 s{sCode + 3}, 0x20000")
        a("v_lshlrev_b32 v2, 7, v0")
        a(f"buffer_load_dword v3, v2, {srd(sCode)}, 0 offen", tag="code")
        a(f"s_sub_u32 s{sT0}, s{sJ}, 28")
        a(f"s_lshl_b32 s{sT1}, s{sX}, 2")
        a(f"s_add_u32 s{sT0}, s{sT0}, s{sT1}")
        a(f"s_lshl_b32 s{sT0}, s{sT0}, 2")
        a(f"s_add_u32 s{sT0}, s{sT0}, s{sW}")
        a(f"s_mul_i32 s{sT1}, s{sT0}, {16 * 896}")
        a(f"s_add_u32 s{sT2}, s{sT1}, {8 * 896}")
        a("v_lshrrev_b32 v4, 3, v1")
        a("v_and_b32 v5, 7, v1")
        a("v_mul_u32_u24 v6, 896, v4")
        a("v_lshl_add_u32 v6, v5, 4, v6")
        a("s_waitcnt lgkmcnt(0)")
        a("v_mov_b32 v24, 0")
        a(f"buffer_load_dword v24, v24, {srd(SWS)}, 0 offen sc1", tag="nonce")
        for st in range(2):
            for i in range(7):
                r = 32 + (st * 7 + i) * 4
                a(f"buffer_load_dwordx4 {vr(r, 4)}, v6, {srd(SQ)}, s{sT1 + st} offen offset:{128 * i}", tag=f"q{st}_{i}")
        a("v_mov_b32 v7, 0x3f803f80")
        for st in range(2):
            for k in range(4):
                a(f"v_mov_b32 v{8 + st * 4 + k}, 0")
        for st in range(2):
            for i in range(7):
                a.wait_vm(f"q{st}_{i}")
                r = 32 + (st * 7 + i) * 4
                for k in range(4):
                    a(f"v_dot2_f32_bf16 v{8 + st * 4 + (k & 1)}, v{r + k}, v7, v{8 + st * 4 + (k & 1)}")
                    a(f"v_dot2_f32_bf16 v{10 + st * 4 + (k & 1)}, v{r + k}, v{r + k}, v{10 + st * 4 + (k & 1)}")
        a("s_nop 2")
        for st in range(2):
            a(f"v_add_f32 v{16 + st}, v{8 + st * 4}, v{9 + st * 4}")
            a(f"v_add_f32 v{18 + st}, v{10 + st * 4}, v{11 + st * 4}")
        for mod in ("quad_perm:[1,0,3,2]", "quad_perm:[2,3,0,1]", "row_half_mirror"):
            a("s_nop 0")
            for r in (16, 17, 18, 19):
                a(f"v_add_f32_dpp v{r}, v{r}, v{r} {mod} row_mask:0xf bank_mask:0xf")
        a(f"s_mov_b32 s{sT1}, 0x3b124925")
        a(f"s_mov_b32 s{sT2}, 0x3727c5ac")
        a(f"v_readfirstlane_b32 s{sTag}, v24")
        a("s_nop 0")
        a(f"s_add_u32 s{sTag}, s{sTag}, 1")
        for st in range(2):
            m, v = 16 + st, 18 + st
            a(f"v_mul_f32 v{m}, s{sT1}, v{m}")
            a(f"v_mul_f32 v{v}, s{sT1}, v{v}")
            a(f"v_fma_f32 v{v}, -v{m}, v{m}, v{v}")
            a(f"v_max_f32 v{v}, 0, v{v}")
            a(f"v_cvt_pk_bf16_f32 v{v}, v{v}, v{v}")
            a(f"v_lshlrev_b32 v{v}, 16, v{v}")
            a(f"v_add_f32 v{v}, s{sT2}, v{v}")
            a(f"v_cvt_pk_bf16_f32 v{v}, v{v}, v{v}")
            a(f"v_lshlrev_b32 v{v}, 16, v{v}")
            a(f"v_sqrt_f32 v{v}, v{v}")
            a("s_nop 0")
            a(f"v_cvt_pk_bf16_f32 v{20 + 2 * st}, v{v}, v{m}")
            a(f"v_mov_b32 v{21 + 2 * st}, s{sTag}")
        a(f"s_lshl_b32 s{sT0}, s{sT0}, 7")
        a(f"s_add_u32 s{sT0}, s{sT0}, {STATS}")
        a("v_lshlrev_b32 v4, 3, v4")
        a("s_mov_b32 exec_lo, 0x01010101")
        a("s_mov_b32 exec_hi, 0x01010101")
        a(f"buffer_store_dwordx2 v[20:21], v4, {srd(SWS)}, s{sT0} offen sc1", tag="s")
        a(f"buffer_store_dwordx2 v[22:23], v4, {srd(SWS)}, s{sT0} offen offset:64 sc1", tag="s")
        a("s_mov_b64 exec, -1")
        self.stamp()
        a("s_cmp_lg_u32 s2, 255")
        a("s_cbranch_scc1 L_hdone")
        a(f"s_cmp_lg_u32 s{sW}, 0")
        a("s_cbranch_scc1 L_hdone")
        a("v_lshlrev_b32 v2, 2, v1")
        for i in range(14):
            a(f"s_mov_b32 s6, {FLG_KV + 256 * i}")
            self.poll(3, 2, "s6")
        a("v_lshlrev_b32 v2, 7, v1")
        for i in range(2):
            a(f"s_mov_b32 s6, {STATS + 8192 * i}")
            self.poll(4, 2, "s6", width=2)
        a(f"v_mov_b32 v2, s{sTag}")
        a("v_mov_b32 v3, 0")
        a("s_mov_b64 exec, 1")
        a(f"buffer_store_dword v2, v3, {srd(SWS)}, 0 offen sc1")
        a("s_mov_b64 exec, -1")
        a.label("L_hdone")
        self.stamp()
        self.store_stamps()
        a.label("L_end")
        a("s_endpgm")
        self.nstamp = n0

    def build(self):
        a = self.a
        hdr = open("parallel_sum__ssm_conv_h3__dense_activation_silu__prompt.s.ref").read().split("\n")
        for l in hdr:
            if l.startswith("; @launch"):
                break
            if l.startswith(";") and "@launch" not in l:
                a.raw(l)
        a.raw("; @launch grid=(256,1,1) block=(256,1,1) lds=163840")
        a.raw('.amdgcn_target "amdgcn-amd-amdhsa--gfx950"')
        a.raw(".text")
        a.raw(f".globl {KN}")
        a.raw(".p2align 8")
        a.raw(f".type {KN},@function")
        a.label(KN)
        self.prologue()
        self.ffn_setup()
        self.phase_a()
        self.gemm1()
        self.silu()
        self.conv()
        self.gemm2()
        self.helper()
        a.label("L_codeend")
        a.raw(f""".section .rodata,"a"
.p2align 6
.amdhsa_kernel {KN}
  .amdhsa_next_free_vgpr 512
  .amdhsa_next_free_sgpr 102
  .amdhsa_accum_offset 256
  .amdhsa_group_segment_fixed_size 0
  .amdhsa_kernarg_size 96
  .amdhsa_user_sgpr_count 2
  .amdhsa_user_sgpr_kernarg_segment_ptr 1
  .amdhsa_system_sgpr_workgroup_id_x 1
.end_amdhsa_kernel""")
        probs = a.check()
        for p in probs:
            print(p, file=sys.stderr)
        return a.text()


if __name__ == "__main__":
    import argparse
    ap = argparse.ArgumentParser()
    ap.add_argument("-o", default="k.s")
    ap.add_argument("--diag", action="store_true")
    ap.add_argument("--map1d", action="store_true")
    ap.add_argument("--norot", action="store_true")
    args = ap.parse_args()
    g = Gen(diag=args.diag, map2d=not args.map1d, rot=not args.norot)
    open(args.o, "w").write(g.build())
```
